```python
import torch

def _softmax(x, axis=-1):
    return torch.softmax(x, dim=axis)
def _gelu(x):
    return torch.nn.functional.gelu(x, approximate="tanh")
def _silu(x):
    return torch.nn.functional.silu(x)
def _sigmoid(x):
    return torch.sigmoid(x)
def _layernorm(x, axis=-1, eps=1e-5):
    m = x.mean(dim=axis, keepdim=True)
    v = x.var(dim=axis, keepdim=True, unbiased=False)
    return (x - m) / torch.sqrt(v + eps)
def _scatter_add(tgt, idx, src, axis=0):
    return tgt.clone().index_add_(axis, idx, src)
def _segment_sum(src, seg, n):
    out = torch.zeros((n,) + src.shape[1:], dtype=src.dtype)
    return out.index_add_(0, seg, src)
def _pad(x, pw):
    flat = tuple(v for pair in reversed(pw) for v in pair)
    return torch.nn.functional.pad(x, flat)

kernel_name = 'recurrent_scan__ssm_conv_s5__glu_gated_bilinear__prompt'

def setup_inputs():

    _w = (lambda a: (lambda t: t.to(torch.bfloat16) if t.is_floating_point() else t)(torch.as_tensor(a)))
    def _A_setup():
        B, S, D = 1, 2048, 448
        P = D
        Lambda_re = -0.5 * (lambda _x: torch.exp(torch.as_tensor(_x)))((lambda *s: torch.randn(*s, dtype=torch.bfloat16) * 0.8)(P))
        Lambda_im = (lambda *s: torch.randn(*s, dtype=torch.bfloat16) * 0.8)(P) * 1.0
        B_re = (lambda *s: torch.randn(*s, dtype=torch.bfloat16) * 1.6)(P, D) * (D ** -0.5)
        B_im = (lambda *s: torch.randn(*s, dtype=torch.bfloat16) * 1.6)(P, D) * (D ** -0.5)
        C_re = (lambda *s: torch.randn(*s, dtype=torch.bfloat16) * 1.6)(D, P) * (P ** -0.5)
        C_im = (lambda *s: torch.randn(*s, dtype=torch.bfloat16) * 1.6)(D, P) * (P ** -0.5)
        log_dt = (lambda *s: torch.randn(*s, dtype=torch.bfloat16) * 0.8)(P) * 0.3 - 2.0
        Dskip = (lambda *s: torch.randn(*s, dtype=torch.bfloat16) * 0.8)(D)
        return {
            "x": _w((lambda *s: torch.randn(*s, dtype=torch.bfloat16) * 0.05)(B, S, D)),
            "Lambda_re": _w(Lambda_re),
            "Lambda_im": _w(Lambda_im),
            "B_re": _w(B_re),
            "B_im": _w(B_im),
            "C_re": _w(C_re),
            "C_im": _w(C_im),
            "log_dt": _w(log_dt),
            "Dskip": _w(Dskip),
        }
    _A_in = _A_setup()

    def _B_setup():
        B, S, D, F = 1, 2048, 448, 1792
        return {
            "x": _w((lambda *s: torch.randn(*s, dtype=torch.bfloat16) * 0.05)(B, S, D)),
            "w_gate": _w((lambda *s: torch.randn(*s, dtype=torch.bfloat16) * 0.2)(D, F) * (D ** -0.5)),
            "w_up": _w((lambda *s: torch.randn(*s, dtype=torch.bfloat16) * 0.2)(D, F) * (D ** -0.5)),
            "w_down": _w((lambda *s: torch.randn(*s, dtype=torch.bfloat16) * 0.2)(F, D) * (F ** -0.5)),
        }
    _B_in = _B_setup()

    return {
        "A_x": _A_in["x"],
        "A_Lambda_re": _A_in["Lambda_re"],
        "A_Lambda_im": _A_in["Lambda_im"],
        "A_B_re": _A_in["B_re"],
        "A_B_im": _A_in["B_im"],
        "A_C_re": _A_in["C_re"],
        "A_C_im": _A_in["C_im"],
        "A_log_dt": _A_in["log_dt"],
        "A_Dskip": _A_in["Dskip"],
        "B_x": _B_in["x"],
        "B_w_gate": _B_in["w_gate"],
        "B_w_up": _B_in["w_up"],
        "B_w_down": _B_in["w_down"],
    }

def reference(A_x, A_Lambda_re, A_Lambda_im, A_B_re, A_B_im, A_C_re, A_C_im, A_log_dt, A_Dskip, B_x, B_w_gate, B_w_up, B_w_down):
    def _A_ref(x, Lambda_re, Lambda_im, B_re, B_im, C_re, C_im, log_dt, Dskip):
        Bsz, L, H = x.shape
        Lam = Lambda_re + 1j * Lambda_im
        Bmat = B_re + 1j * B_im
        Cmat = C_re + 1j * C_im
        dt = torch.exp(log_dt)
        Lam_bar = torch.exp(dt * Lam)
        B_bar = ((Lam_bar - 1.0) / Lam)[:, None] * Bmat
        Bu = torch.einsum("bld,pd->blp", x + 0j, B_bar)
        h = torch.zeros_like(Bu[:, 0, :])
        hs = []
        for t in range(L):
            h = Lam_bar[None, :] * h + Bu[:, t, :]
            hs.append(h)
        hseq = torch.stack(hs, 1)
        y = 2.0 * torch.einsum("blp,dp->bld", hseq, Cmat).real + x * Dskip[None, None, :]
        return y

    def _B_ref(x, w_gate, w_up, w_down):
        g = torch.einsum("bsd,df->bsf", x, w_gate)
        u = torch.einsum("bsd,df->bsf", x, w_up)
        h = g * u
        return torch.einsum("bsf,fd->bsd", h, w_down)

    x = A_x
    xn = _layernorm(x, axis=-1)
    s = _A_ref(xn, A_Lambda_re, A_Lambda_im, A_B_re, A_B_im, A_C_re, A_C_im, A_log_dt, A_Dskip)
    g = _silu(_B_ref(xn, B_w_gate, B_w_up, B_w_down))
    return x + s * g
```

```python
import re

REG_RE = re.compile(r'\b([vas])(\d+)\b|\b([vas])\[(\d+):(\d+)\]|\b(vcc|exec|m0|scc)\b')

def regs_of(op):
    out = []
    for m in REG_RE.finditer(op):
        if m.group(1): out.append((m.group(1), int(m.group(2))))
        elif m.group(3): out += [(m.group(3), i) for i in range(int(m.group(4)), int(m.group(5))+1)]
        else: out.append((m.group(6), 0))
    return out

TRANS = ('v_exp_f32','v_log_f32','v_rcp_f32','v_rsq_f32','v_sqrt_f32','v_sin_f32','v_cos_f32','v_rcp_iflag_f32')

class Inst:
    def __init__(self, text):
        self.text = text
        t = text.split(';')[0].strip()
        self.is_label = t.endswith(':')
        self.is_dir = t.startswith('.') or t == ''
        self.mn = '' if (self.is_label or self.is_dir) else t.split()[0]
        rest = t[len(self.mn):].strip() if self.mn else ''
        ops = []; depth = 0; cur = ''
        for ch in rest:
            if ch == '[': depth += 1
            if ch == ']': depth -= 1
            if ch == ',' and depth == 0: ops.append(cur.strip()); cur = ''
            else: cur += ch
        if cur.strip(): ops.append(cur.strip())
        self.ops = ops
        mn = self.mn
        self.mfma = mn.startswith('v_mfma')
        self.valu = mn.startswith('v_') and not self.mfma
        self.salu = mn.startswith('s_')
        self.ds = mn.startswith('ds_')
        self.vmem = mn.startswith('buffer_') or mn.startswith('global_')
        self.trans = mn.replace('_e32','').replace('_e64','') in TRANS
        self.dot = mn.startswith('v_dot')
        self.dpp = ('quad_perm' in t or 'row_' in t or '_dpp' in mn)
        self.permlane = mn.startswith('v_permlane')
        self.ldsdma = self.vmem and (' lds' in t or 'load_lds' in mn)
        w = []; r = []
        def R(i): return regs_of(ops[i].split(' ')[0] if False else ops[i]) if i < len(ops) else []
        if self.mfma:
            w = R(0); self.srcA = R(1); self.srcB = R(2); self.srcC = R(3); r = self.srcA + self.srcB + self.srcC
            self.passes = 8 if '32x32' in mn else 4
        elif self.valu:
            if mn.startswith('v_cmp'):
                w = R(0); r = sum((R(i) for i in range(1, len(ops))), [])
            elif self.permlane and 'swap' in mn:
                w = R(0) + R(1); r = R(0) + R(1)
            elif mn.startswith('v_add_co') or mn.startswith('v_sub_co') or mn.startswith('v_addc_co') or mn.startswith('v_subb_co') or mn.startswith('v_mad_u64'):
                w = R(0) + R(1); r = sum((R(i) for i in range(2, len(ops))), [])
            else:
                w = R(0); r = sum((R(i) for i in range(1, len(ops))), [])
                if mn.startswith('v_fmac') or mn.startswith('v_dot2c') or mn.startswith('v_writelane') or 'dst_unused:UNUSED_PRESERVE' in t or self.dpp: r += R(0)
        elif self.ds:
            if 'write' in mn or mn.startswith('ds_add') : r = sum((R(i) for i in range(len(ops))), [])
            else: w = R(0); r = sum((R(i) for i in range(1, len(ops))), [])
        elif self.vmem:
            if self.ldsdma: r = sum((R(i) for i in range(len(ops))), []) + [('m0',0)]
            elif 'store' in mn or ('atomic' in mn and ' sc0' not in t): r = sum((R(i) for i in range(len(ops))), [])
            else:
                w = R(0); r = sum((R(i) for i in range(1, len(ops))), [])
                if 'd16' in mn or 'atomic' in mn: r += R(0)
            self.wide_store = ('store' in mn) and ('x3' in mn or 'x4' in mn)
            if self.wide_store:
                self.sdata = R(0) if mn.startswith('buffer') else R(1)
        elif self.salu:
            if mn.startswith(('s_cmp','s_cbranch','s_branch','s_waitcnt','s_barrier','s_nop','s_endpgm','s_sleep','s_setprio','s_bitcmp')):
                r = sum((R(i) for i in range(len(ops))), [])
            else:
                w = R(0); r = sum((R(i) for i in range(1, len(ops))), [])
                if 'saveexec' in mn: w += [('exec',0)]
        self.w = set(w); self.r = set(r)
    def states(self):
        if self.is_label or self.is_dir: return 0
        if self.mn == 's_nop': return int(self.ops[0], 0) + 1
        return 1

def is_s(x): return x[0] in ('s','vcc')
def is_v(x): return x[0] in ('v','a')

def need(p, c):
    n = 0
    if p.valu:
        wv = {x for x in p.w if is_v(x)}; ws = {x for x in p.w if is_s(x)}
        if c.mfma and (wv & c.r): n = max(n, 3 if p.dot else 2)
        if c.valu:
            if ws & c.r:
                n = max(n, 4 if c.mn.startswith(('v_readlane','v_writelane','v_div_fmas')) else 2)
            if wv & c.r:
                if c.mn.startswith(('v_readlane','v_readfirstlane')): n = max(n, 1)
                if c.dpp or c.permlane: n = max(n, 2)
                if p.trans and not c.trans: n = max(n, 1)
                if 'sdwa' in p.mn or 'op_sel' in p.text: n = max(n, 1)
            if p.dot and (wv & (c.r | c.w)):
                if c.mn == p.mn and not (wv & set(regs_of(c.ops[1]) + regs_of(c.ops[2]))): pass
                else: n = max(n, 3)
        if p.dot and (c.vmem or c.ds) and (wv & c.r): n = max(n, 3)
        if c.vmem and (ws & c.r): n = max(n, 5)
        if c.salu and (ws & c.r): n = max(n, 2)
        if ('exec',0) in p.w:
            if c.mfma: n = max(n, 4)
            if c.valu and (c.dpp): n = max(n, 5)
            if c.valu and (c.permlane or c.mn.startswith(('v_readlane','v_readfirstlane','v_writelane'))): n = max(n, 4)
    if p.mfma:
        big = {4: 8, 8: 12}[p.passes]
        if c.mfma:
            if p.w & (set(c.srcA) | set(c.srcB)): n = max(n, big)
            if p.w & set(c.srcC):
                if not (set(c.srcC) == p.w and c.passes == p.passes): n = max(n, {4: 6, 8: 10}[p.passes])
            elif p.w & c.w: n = max(n, big)
        elif c.valu or c.vmem or c.ds:
            if p.w & (c.r | c.w): n = max(n, big)
        if c.valu and (set(p.srcC) & c.w): n = max(n, {4: 3, 8: 7}[p.passes])
    if p.salu and ('m0',0) in p.w and c.ldsdma: n = max(n, 1)
    if p.vmem and getattr(p, 'wide_store', False) and (set(p.sdata) & c.w): n = max(n, 2)
    return n

def insert_nops(insts, lookback=24):
    out = []
    nn = 0
    for c in insts:
        if c.is_label or c.is_dir:
            out.append(c); continue
        req = 0; dist = 0
        for p in reversed(out):
            if p.is_dir: continue
            if p.is_label:
                continue
            k = need(p, c)
            if k - dist > req: req = k - dist
            dist += p.states()
            if dist >= lookback: break
        while req > 0:
            k = min(req, 16); out.append(Inst(f"s_nop {k-1}")); req -= k; nn += 1
        out.append(c)
    return out, nn

class Prog:
    def __init__(self):
        self.ins = []
        self.vmq = []
        self.lgq = []
    def e(self, text):
        for line in text.split('\n'):
            line = line.strip()
            if line: self.ins.append(Inst(line))
    def vm(self, text, tag=None, optional=False):
        self.e(text)
        if not optional: self.vmq.append(tag)
    def lg(self, text, tag=None):
        self.e(text); self.lgq.append(tag)
    def _n(self, q, tag):
        idx = [i for i, t in enumerate(q) if t == tag or (isinstance(tag, (list, tuple, set)) and t in tag)]
        if not idx: return None
        return len(q) - 1 - idx[-1]
    def wait(self, vm=None, lg=None):
        parts = []
        if vm is not None:
            n = 0 if vm == 'all' else self._n(self.vmq, vm)
            if n is not None:
                n = min(n, 63); parts.append(f"vmcnt({n})"); self.vmq = self.vmq[len(self.vmq)-n:] if n else []
        if lg is not None:
            n = 0 if lg == 'all' else self._n(self.lgq, lg)
            if n is not None:
                n = min(n, 15); parts.append(f"lgkmcnt({n})"); self.lgq = self.lgq[len(self.lgq)-n:] if n else []
        if parts: self.e("s_waitcnt " + " ".join(parts))
    def text(self):
        ins, nn = insert_nops(self.ins)
        self.nops = nn
        return "\n".join((i.text if (i.is_label or i.is_dir) else "  " + i.text) for i in ins)
```

```python
from dsl import *
import math

WS_HF = 0
WS_HF_BYTES = 64*168*1024
WS_ST = WS_HF_BYTES
WS_E = WS_ST + 2048*8
WS_BYTES = WS_E + 16*448*8

SLOT = 28672
MISC = 5*SLOT
ARR = MISC
LOG2E = 0x3fb8aa3b
INV2PI = 0x3e22f983

def f32(x):
    import struct
    return "0x%08x" % struct.unpack("<I", struct.pack("<f", x))[0]

def cmul_sq(p, dr, di, sr, si, t):
    return [f"v_mul_f32 v{t}, v{si}, v{si}", f"v_mul_f32 v{di}, v{sr}, v{si}" if di != si else None]

def gen_k1(p, lab, D=6, per_gap=3, code_bytes=32768, fused=False):
    X0 = 16; SR = 128; SI = 144; Q1 = 160
    def X(ks): return f"v[{X0+4*ks}:{X0+4*ks+3}]"
    R = D + 2
    FR0 = 64
    def FR(m): b = FR0 + 4*(m % R); return b
    vL16 = 1
    vLr, vLi = 2, 3
    vP16r, vP16i = 4, 5
    vP128r, vP128i = 6, 7
    vP1kr, vP1ki = 8, 9
    vKr, vKi = 10, 11
    vT0, vT1 = 12, 13
    vW = 14
    vArr = 15
    vRs, vMr = 224, 225
    T = list(range(226, 256))
    e = p.e
    e(f"s_cmp_ge_u32 s2, 224")
    e(f"s_cbranch_scc1 {lab}_end")
    e("s_load_dwordx16 s[64:79], s[0:1], 0")
    e("s_load_dwordx4 s[80:83], s[0:1], 80")
    e("s_load_dwordx4 s[84:87], s[0:1], 112")
    e("s_getpc_b64 s[4:5]")
    e("v_lshlrev_b32 v160, 7, v0")
    e(f"v_min_u32 v160, {code_bytes-128}, v160")
    p.vm("global_load_dword v255, v160, s[4:5]", "pf")
    e("v_lshrrev_b32 v161, 6, v0")
    e("v_readfirstlane_b32 s3, v161")
    e("v_and_b32 v0, 63, v0")
    e("s_and_b32 s6, s2, 7")
    e("s_lshr_b32 s7, s2, 3")
    e("s_lshr_b32 s28, s6, 1")
    e("s_lshl_b32 s28, s28, 2")
    e("s_and_b32 s29, s7, 3")
    e("s_add_u32 s28, s28, s29")
    e("s_and_b32 s29, s6, 1")
    e("s_mul_i32 s29, s29, 7")
    e("s_lshr_b32 s7, s7, 2")
    e("s_add_u32 s29, s29, s7")
    e(f"v_lshlrev_b32 v{vL16}, 4, v0")
    e("v_lshrrev_b32 v170, 3, v0")
    e("s_movk_i32 s30, 147")
    e("s_mov_b32 s61, 0")
    for n in range(7):
        e(f"v_add_u32 v171, {8*n}, v170")
        e(f"v_mul_u32_u24 v171, s30, v171")
        e(f"v_bfe_u32 v171, v171, 11, 3")
        e(f"v_lshlrev_b32 v171, 4, v171")
        e(f"v_xor_b32 v{162+n}, v171, v{vL16}")
    e("s_lshl_b32 s31, s28, 2")
    e("s_add_u32 s31, s31, s3")
    e(f"s_mul_i32 s40, s31, {32*896}")
    e(f"s_mul_i32 s41, s3, {SLOT}")
    e("s_waitcnt lgkmcnt(0)")
    e("s_mov_b32 s8, s64\ns_mov_b32 s9, s65")
    e(f"s_mov_b32 s10, {2048*896}\ns_mov_b32 s11, 0x20000")
    e("v_and_b32 v172, 31, v0")
    e("s_lshl_b32 s42, s29, 6")
    e("v_lshl_add_u32 v173, v172, 1, s42")
    p.vm("global_load_ushort v176, v173, s[66:67]", "small")
    p.vm("global_load_ushort v177, v173, s[68:69]", "small")
    p.vm("global_load_ushort v178, v173, s[78:79]", "small")
    for n in range(28):
        if n % 4 == 0:
            e(f"s_add_u32 m0, s41, {n*1024}")
            e(f"s_add_u32 s43, s40, {n*1024}")
        if n in (7, 14, 21):
            pass
        vo = 162 + n % 7
        p.vm(f"buffer_load_dwordx4 v{vo}, s[8:11], s43 offen offset:{(n%4)*1024} lds", "x")
        e(f"v_xor_b32 v{vo}, 64, v{vo}")
    e("v_lshrrev_b32 v170, 2, v0")
    e("v_and_b32 v174, 3, v0")
    e("s_movk_i32 s44, 448")
    for n in range(7):
        e(f"v_add_u32 v171, {16*n}, v170")
        e(f"v_mul_u32_u24 v175, s30, v171")
        e(f"v_lshlrev_b32 v171, 6, v171")
        e(f"v_lshrrev_b32 v179, 10, v175")
        e(f"v_mad_u32_u24 v171, v179, s44, v171")
        e(f"v_bfe_u32 v175, v175, 12, 2")
        e(f"v_xor_b32 v175, v175, v174")
        e(f"v_lshl_add_u32 v{180+n}, v175, 4, v171")
    e("s_cmp_lt_u32 s3, 2")
    e("s_cselect_b32 s12, s70, s72\ns_cselect_b32 s13, s71, s73")
    e("s_cselect_b32 s16, s80, s82\ns_cselect_b32 s17, s81, s83")
    e(f"s_mov_b32 s14, {448*896}\ns_mov_b32 s15, 0x20000")
    e(f"s_mov_b32 s18, {448*3584}\ns_mov_b32 s19, 0x20000")
    e("s_mov_b32 s20, s86\ns_mov_b32 s21, s87")
    e(f"s_mov_b32 s22, {WS_BYTES}\ns_mov_b32 s23, 0x20000")
    e("s_mov_b32 s24, s84\ns_mov_b32 s25, s85")
    e("s_mov_b32 s26, 256\ns_mov_b32 s27, 0x20000")
    e(f"s_mul_i32 s45, s3, 7168")
    e("s_and_b32 s46, s3, 1")
    e("s_lshl_b32 s47, s29, 1")
    e("s_add_u32 s47, s47, s46")
    e(f"s_mul_i32 s47, s47, {16*896}")
    def run(items):
        for it in items:
            if it[0] == 'e': p.e(it[1])
            elif it[0] == 'vm': p.vm(it[1], it[2], optional=(len(it) > 3 and it[3]))
            elif it[0] == 'lg': p.lg(it[1], it[2])
            elif it[0] == 'wait': p.wait(vm=it[1], lg=it[2])
    def dma_ssm(half, slot, tag):
        items = []
        for n in range(7):
            items.append(('e', f"s_add_u32 m0, s45, {slot*SLOT + n*1024}"))
            if n == 0: items.append(('e', f"s_add_u32 s43, s47, {half*448}"))
            items.append(('vm', f"buffer_load_dwordx4 v{180+n}, s[12:15], s43 offen lds", tag))
        return items
    run(dma_ssm(0, 4, "e0"))
    e("v_lshrrev_b32 v170, 3, v0")
    e("s_movk_i32 s44, 3584")
    e(f"v_mul_u32_u24 v{vW}, s44, v170")
    e("v_and_b32 v171, 7, v0")
    e("v_lshrrev_b32 v175, 2, v0")
    e("v_and_b32 v175, 4, v175")
    e("v_xor_b32 v171, v171, v175")
    e(f"v_lshl_add_u32 v{vW}, v171, 4, v{vW}")
    e(f"s_mul_i32 s46, s46, {56*3584}")
    e("s_lshl_b32 s48, s29, 8")
    e("s_add_u32 s46, s46, s48")
    e(f"v_add_u32 v{vW}, s46, v{vW}")
    for n in range(7):
        e(f"s_mov_b32 s{32+n}, {n*28672 - (n%4)*1024}")
    def dma_w(ep, tag):
        slot = (ep + 2 + 4) % 5
        items = []
        for n in range(7):
            if n % 4 == 0:
                items.append(('e', f"s_add_u32 m0, s45, {slot*SLOT + n*1024}"))
            items.append(('vm', f"buffer_load_dwordx4 v{vW}, s[16:19], s{32+n} offen offset:{(n%4)*1024} lds", tag))
        adv = 112*3584 if ep != 3 else (128 - 3*112*3584) & 0xffffffff
        if ep < 7: items.append(('e', f"v_add_u32 v{vW}, {adv}, v{vW}"))
        return items
    e("v_lshrrev_b32 v170, 5, v0")
    e("v_bfe_u32 v171, v0, 2, 1")
    e("v_lshlrev_b32 v171, 4, v171")
    e("v_bfe_u32 v175, v0, 3, 2")
    e("v_lshl_add_u32 v171, v175, 2, v171")
    e("v_add_u32 v171, v171, v174")
    e("v_mov_b32 v187, v171")
    e("s_movk_i32 s44, 896")
    e("v_mul_u32_u24 v175, s44, v171")
    e("v_add_u32 v175, s41, v175")
    e("v_bfe_u32 v179, v171, 1, 3")
    e("v_xor_b32 v179, v179, v170")
    for q in range(4):
        e(f"v_xor_b32 v192, {2*q}, v179")
        e(f"v_lshl_add_u32 v{188+q}, v192, 4, v175")
    e("s_movk_i32 s44, 448")
    e("v_mul_u32_u24 v175, s44, v172")
    e(f"v_add_u32 v175, {4*SLOT}, v175")
    e("v_bfe_u32 v179, v0, 2, 2")
    e("v_xor_b32 v179, v179, v170")
    e(f"v_lshl_add_u32 v{vT0}, v179, 4, v175")
    e("v_xor_b32 v179, 2, v179")
    e(f"v_lshl_add_u32 v{vT1}, v179, 4, v175")
    e(f"v_lshlrev_b32 v{vArr}, 3, v172")
    e(f"v_add_u32 v{vArr}, {ARR}, v{vArr}")
    e("v_mov_b32 v192, 0\nv_mov_b32 v193, 0\nv_mov_b32 v194, 0\nv_mov_b32 v195, 0")
    e(f"v_add_u32 v196, {ARR}, v{vL16}")
    p.lg("ds_write_b128 v196, v[192:195]", "z")
    p.lg("ds_write_b128 v196, v[192:195] offset:768", "z")
    p.wait(vm="small")
    a, b, c_, d_ = 192, 193, 194, 195
    e("v_lshlrev_b32 v176, 16, v176\nv_lshlrev_b32 v177, 16, v177\nv_lshlrev_b32 v178, 16, v178")
    e(f"v_mul_f32 v178, {LOG2E:#x}, v178")
    e("v_exp_f32 v178, v178")
    e("v_cvt_pk_bf16_f32 v178, v178, v178")
    e("v_and_b32 v178, 0xffff0000, v178")
    e(f"v_mul_f32 v{a}, v178, v176")
    e(f"v_mul_f32 v{b}, v178, v177")
    e(f"v_mul_f32 v{a}, {LOG2E:#x}, v{a}")
    e(f"v_exp_f32 v{a}, v{a}")
    e(f"v_mul_f32 v{b}, {INV2PI:#x}, v{b}")
    e(f"v_rndne_f32 v{c_}, v{b}")
    e(f"v_sub_f32 v{b}, v{b}, v{c_}")
    e(f"v_cos_f32 v{c_}, v{b}")
    e(f"v_sin_f32 v{d_}, v{b}")
    e(f"v_mul_f32 v{vLr}, v{a}, v{c_}")
    e(f"v_mul_f32 v{vLi}, v{a}, v{d_}")
    e(f"v_mul_f32 v{a}, v176, v176")
    e(f"v_fmac_f32 v{a}, v177, v177")
    e(f"v_rcp_f32 v{a}, v{a}")
    e(f"v_add_f32 v{b}, -1.0, v{vLr}")
    e(f"v_mul_f32 v{c_}, v{b}, v176")
    e(f"v_fmac_f32 v{c_}, v{vLi}, v177")
    e(f"v_mul_f32 v{d_}, v{vLi}, v176")
    e(f"v_fma_f32 v{d_}, -v{b}, v177, v{d_}")
    e(f"v_add_f32 v{a}, v{a}, v{a}")
    e(f"v_mul_f32 v{vKr}, v{c_}, v{a}")
    e(f"v_mul_f32 v{vKi}, v{d_}, v{a}")
    def sq(dr, di, sr, si):
        e(f"v_mul_f32 v{a}, v{si}, v{si}")
        e(f"v_mul_f32 v{b}, v{sr}, v{si}")
        e(f"v_fma_f32 v{dr}, v{sr}, v{sr}, -v{a}")
        e(f"v_add_f32 v{di}, v{b}, v{b}")
    sq(vP16r, vP16i, vLr, vLi)
    for _ in range(3): sq(vP16r, vP16i, vP16r, vP16i)
    sq(vP128r, vP128i, vP16r, vP16i)
    for _ in range(2): sq(vP128r, vP128i, vP128r, vP128i)
    sq(vP1kr, vP1ki, vP128r, vP128i)
    for _ in range(2): sq(vP1kr, vP1ki, vP1kr, vP1ki)
    p.wait(vm="x")
    e("s_mov_b32 s44, 0x3f803f80")
    A1 = [200, 201]; A2 = [202, 203]
    for r in A1 + A2: e(f"v_mov_b32 v{r}, 0")
    def rdx(ks): p.lg(f"ds_read_b128 {X(ks)}, v{188+ks%4} offset:{(ks//4)*128}", f"x{ks}")
    def dots(ks):
        out = []
        for i in range(4):
            r = X0 + 4*ks + i
            out.append(f"v_dot2c_f32_bf16 v{A1[i%2]}, s44, v{r}")
            out.append(f"v_dot2c_f32_bf16 v{A2[i%2]}, v{r}, v{r}")
        return out
    for ks in range(14): rdx(ks)
    for ks in range(14):
        rdx(14+ks); p.wait(lg=f"x{ks}")
        for o in dots(ks): e(o)
    p.wait(vm="e0", lg="all")
    e("s_barrier")
    pend = dma_ssm(1, 0, "e1") + dma_w(0, "e2") + dma_w(1, "e3") + dma_w(2, "e4")
    def pop_dma(k):
        n = 0
        while pend and n < k:
            it = pend.pop(0); run([it]); n += (it[0] == 'vm')
    for ks in range(14, 28):
        pop_dma(1)
        for o in dots(ks): e(o)
    e(f"v_add_f32 v200, v200, v201\nv_add_f32 v202, v202, v203")
    e("v_mov_b32 v201, v200\nv_mov_b32 v203, v202")
    e("v_permlane32_swap_b32 v200, v201\nv_permlane32_swap_b32 v202, v203")
    e(f"v_add_f32 v200, v200, v201\nv_add_f32 v202, v202, v203")
    e(f"v_mul_f32 v200, {f32(1.0/448)}, v200")
    e(f"v_mul_f32 v202, {f32(1.0/448)}, v202")
    e("v_fma_f32 v202, -v200, v200, v202")
    e("v_max_f32 v202, 0, v202")
    e("v_cvt_pk_bf16_f32 v204, v200, v202")
    e("v_lshlrev_b32 v200, 16, v204")
    e("v_and_b32 v202, 0xffff0000, v204")
    e(f"v_add_f32 v202, {f32(1e-5)}, v202")
    e("v_cvt_pk_bf16_f32 v202, v202, v202")
    e("v_and_b32 v202, 0xffff0000, v202")
    e("v_sqrt_f32 v202, v202")
    e("v_cvt_pk_bf16_f32 v202, v202, v202")
    e("v_and_b32 v202, 0xffff0000, v202")
    e(f"v_rcp_f32 v{vRs}, v202")
    e(f"v_mov_b32 v201, v{vRs}")
    e(f"v_mul_f32 v{vMr}, v200, v{vRs}")
    e(f"v_sub_f32 v{vMr}, 0, v{vMr}")
    e("v_lshlrev_b32 v187, 3, v187")
    e(f"s_lshl_b32 s43, s31, 8")
    e(f"s_add_u32 s43, s43, {WS_ST}")
    sc = " sc1" if fused else ""
    p.vm(f"buffer_store_dwordx2 v[200:201], v187, s[20:23], s43 offen{sc}", "st")
    e("s_mov_b32 s44, 0xffff0000")
    def passB(ks):
        out = []
        for i in range(4):
            r = X0 + 4*ks + i; t0 = T[(2*i) % 8]; t1 = T[(2*i+1) % 8]
            out += [f"v_lshlrev_b32 v{t0}, 16, v{r}", f"v_and_b32 v{t1}, s44, v{r}",
                    f"v_fma_f32 v{t0}, v{t0}, v{vRs}, v{vMr}", f"v_fma_f32 v{t1}, v{t1}, v{vRs}, v{vMr}",
                    f"v_cvt_pk_bf16_f32 v{r}, v{t0}, v{t1}"]
        return out
    M = []
    for ep in range(10):
        if ep < 2:
            for s in range(14):
                ks = 14*ep + s
                for mat in range(2):
                    acc = f"v[{SR+16*mat}:{SR+16*mat+15}]"
                    M.append(dict(ep=ep, ks=ks, kind='ssm', acc=acc, first=(ks == 0),
                                  rd=[('b128', (vT0, vT1)[s & 1], mat*14336 + (s >> 1)*64)]))
        else:
            quad = (ep-2)//4; part = (ep-2) % 4
            for s in range(7):
                ks = 7*part + s
                for mat in range(2):
                    for tt in range(2):
                        i = mat*2 + tt
                        acc = f"a[{16*i}:{16*i+15}]" if quad == 0 else f"v[{Q1+16*i}:{Q1+16*i+15}]"
                        M.append(dict(ep=ep, ks=ks, kind='ffn', acc=acc, first=(ks == 0),
                                      rd=[('tr', (vT0, vT1)[tt], mat*14336 + s*2048 + q*512) for q in range(2)]))
    side = {k: [] for k in range(10)}
    E = lambda s: [('e', x) for x in (s if isinstance(s, list) else s.split('\n'))]
    er, ei, nr, ni = T[0], T[1], T[2], T[3]
    s2 = []
    cur = (SR, SI)
    pp = [(T[0], T[1]), (T[2], T[3])]
    for jx in range(1, 16):
        n_r, n_i = pp[jx % 2]
        s2 += [f"v_fma_f32 v{n_r}, v{vLr}, v{cur[0]}, v{SR+jx}", f"v_fma_f32 v{n_i}, v{vLr}, v{cur[1]}, v{SI+jx}",
               f"v_fma_f32 v{n_r}, -v{vLi}, v{cur[1]}, v{n_r}", f"v_fmac_f32 v{n_i}, v{vLi}, v{cur[0]}"]
        cur = (n_r, n_i)
    assert cur == (T[2], T[3]) and T[2] % 2 == 0
    s2 += [f"v_lshrrev_b32 v{T[4]}, 5, v0", f"v_lshl_add_u32 v{T[4]}, v{T[4]}, 8, v{vArr}", "s_lshl_b32 s43, s3, 9", f"v_add_u32 v{T[4]}, s43, v{T[4]}"]
    side[2] = E(s2) + [('lg', f"ds_write_b64 v{T[4]}, v[{T[2]}:{T[3]}] offset:2048", "ew"), ('wait', None, "ew")]
    vSeg = T[4]
    Z = T[6:22]
    assert Z[0] % 2 == 0
    def horner(Zr, n, pr, pi, o):
        out = []
        for i in range(1, n):
            hr, hi = Zr[2*i-2], Zr[2*i-1]; zr, zi = Zr[2*i], Zr[2*i+1]
            out += [f"v_fmac_f32 v{zr}, v{pr}, v{hr}", f"v_fmac_f32 v{zi}, v{pr}, v{hi}",
                    f"v_fma_f32 v{zr}, -v{pi}, v{hi}, v{zr}", f"v_fmac_f32 v{zi}, v{pi}, v{hr}"]
        return out
    s3 = [('lg', f"ds_read_b64 v[{Z[2*i]}:{Z[2*i+1]}], v{vArr} offset:{2048+256*i}", "er") for i in range(8)]
    s3 += [('wait', None, "er")] + E(horner(Z, 8, vP16r, vP16i, None))
    s3 += E([f"v_subrev_u32 v{T[5]}, {ARR}, v{vArr}", f"s_mul_i32 s49, s28, {448*8}", "s_lshl_b32 s50, s29, 8", "s_add_u32 s49, s49, s50", f"s_add_u32 s49, s49, {WS_E}"])
    s3 += [('vm', f"buffer_store_dwordx2 v[{Z[14]}:{Z[15]}], v{T[5]}, s[20:23], s49 offen sc1", "pub")]
    side[3] = s3
    vP8 = T[5]
    s4 = []
    for jx in range(16):
        t = T[jx % 2]
        s4 += [f"v_mul_f32 v{t}, v{vKi}, v{SR+jx}", f"v_mul_f32 v{SR+jx}, v{vKr}, v{SR+jx}",
               f"v_fma_f32 v{SR+jx}, -v{vKi}, v{SI+jx}, v{SR+jx}", f"v_fma_f32 v{SI+jx}, -v{vKr}, v{SI+jx}, -v{t}"]
    flag = [('wait', "pub", None)] + E(["s_lshl_b32 s50, 1, s28", f"v_mov_b32 v{T[2]}, s50", "s_lshl_b32 s50, s29, 2", "s_mov_b64 exec, 1"]) + \
           [('vm', f"buffer_atomic_or v{T[2]}, off, s[24:27], s50 sc1", "flag"), ('e', "s_mov_b64 exec, -1")]
    side[4] = E(s4[:24]) + [('atomic', flag)] + E(s4[24:])
    def epi(quad, pair, tmp, acc_is_a):
        out = []
        P = tmp[:8]; ta, tb_, tc, td = tmp[8:12]
        for i in range(8):
            if acc_is_a:
                g0, g1, u0, u1 = 16*pair+2*i, 16*pair+2*i+1, 32+16*pair+2*i, 32+16*pair+2*i+1
                out += E([f"v_accvgpr_read_b32 v{ta}, a{g0}", f"v_accvgpr_read_b32 v{tb_}, a{u0}", f"v_accvgpr_read_b32 v{tc}, a{g1}", f"v_accvgpr_read_b32 v{td}, a{u1}",
                          f"v_mul_f32 v{ta}, v{ta}, v{tb_}", f"v_mul_f32 v{tc}, v{tc}, v{td}", f"v_cvt_pk_bf16_f32 v{P[i]}, v{ta}, v{tc}"])
            else:
                g0 = Q1+16*pair+2*i; u0 = Q1+32+16*pair+2*i
                out += E([f"v_pk_mul_f32 v[{g0}:{g0+1}], v[{g0}:{g0+1}], v[{u0}:{u0+1}]", f"v_cvt_pk_bf16_f32 v{P[i]}, v{g0}, v{g0+1}"])
            if i in (3, 7):
                b = i // 4
                out.append(('vm', f"buffer_store_dwordx4 v[{P[4*b]}:{P[4*b+3]}], v{vL16}, s[20:23], s{51+quad} offen offset:{(2*pair+b)*1024}{sc}", "hf"))
        return out
    e(f"s_mul_i32 s51, s31, 168")
    e("s_lshl_b32 s52, s29, 3")
    e("s_add_u32 s51, s51, s52")
    e("s_lshl_b32 s51, s51, 10")
    e("s_add_u32 s52, s51, 4096")
    TMP = [T[10+i] for i in range(12)]
    assert TMP[0] % 4 == 0
    if TMP[0] % 4: raise
    side[6] = epi(0, 0, TMP, True)
    poll = E(["s_lshl_b32 s50, s29, 2"]) + [('vm', f"buffer_load_dword v{T[2]}, off, s[24:27], s50 sc1", "poll")]
    chk = [('wait', "poll", None)] + E([f"v_readfirstlane_b32 s53, v{T[2]}", "s_lshl_b32 s54, 1, s28", "s_sub_u32 s54, s54, 1", "s_and_b32 s53, s53, s54", "s_cmp_eq_u32 s53, s54", f"s_cbranch_scc0 {lab}_spin", f"{lab}_ready:"])
    p.tail = getattr(p, 'tail', []) + [f"{lab}_spin:", "s_add_u32 s61, s61, 1", "s_cmp_gt_u32 s61, 200000", f"s_cbranch_scc1 {lab}_ready", "s_sleep 1", f"buffer_load_dword v{T[2]}, off, s[24:27], s50 sc1", "s_waitcnt vmcnt(0)", f"v_readfirstlane_b32 s53, v{T[2]}", "s_nop 3", "s_and_b32 s53, s53, s54", "s_cmp_eq_u32 s53, s54", f"s_cbranch_scc0 {lab}_spin", f"s_branch {lab}_ready"]
    ZZ = [248,249,250,251,252,253,254,255, 226,227,228,229, 232,233,234,235]
    eld = E([f"v_lshrrev_b32 v{vRs}, 5, v0", f"s_movk_i32 s55, {8*448*8}", f"v_mad_u32_u24 v{vRs}, v{vRs}, s55, v{vP8}",
             f"s_sub_u32 s55, s49, {WS_E + 16*448*8}", f"v_add_u32 v{vRs}, s55, v{vRs}"])
    for i in range(8):
        dst = ZZ[2*i]
        eld += [('vm', f"buffer_load_dwordx2 v[{dst}:{dst+1}], v{vRs}, s[56:59], 0 offen sc1", "E")]
        if i < 7: eld += E([f"v_add_u32 v{vRs}, {448*8}, v{vRs}"])
    e(f"s_add_u32 s56, s86, {WS_E}\ns_addc_u32 s57, s87, 0")
    e(f"s_mov_b32 s58, {16*448*8}\ns_mov_b32 s59, 0x20000")
    ep7 = epi(0, 1, TMP, True)
    side[7] = poll + ep7[:30] + [('atomic', chk)] + eld + ep7[30:]
    s8 = [('wait', "E", None)] + E(horner(ZZ, 8, vP128r, vP128i, None))
    hr, hi = ZZ[14], ZZ[15]
    t0, t1 = 236, 237
    s8 += E([f"v_mov_b32 v{t0}, v{hr}", f"v_mov_b32 v{t1}, v{hi}",
             f"v_permlane32_swap_b32 v{hr}, v{t0}", f"v_permlane32_swap_b32 v{hi}, v{t1}",
             f"v_fmac_f32 v{t0}, v{vP1kr}, v{hr}", f"v_fmac_f32 v{t1}, v{vP1kr}, v{hi}",
             f"v_fma_f32 v{t0}, -v{vP1ki}, v{hi}, v{t0}", f"v_fmac_f32 v{t1}, v{vP1ki}, v{hr}"])
    s8 += [('lg', f"ds_write_b64 v{vArr}, v[{t0}:{t1}] offset:{7*256}", "hc"), ('wait', None, "hc")]
    Z3 = list(range(240, 256))
    s8 += [('lg', f"ds_read_b64 v[{Z3[2*i]}:{Z3[2*i+1]}], v{vSeg} offset:{256*i}", "zr") for i in range(8)]
    s8 += [('wait', None, "zr")] + E(horner(Z3, 8, vP16r, vP16i, None))
    hr, hi = Z3[14], Z3[15]
    s8 += E([f"v_mul_f32 v{t0}, v{vKr}, v{hr}", f"v_mul_f32 v{t1}, v{vKi}, v{hr}",
             f"v_fma_f32 v{t0}, -v{vKi}, v{hi}, v{t0}", f"v_fma_f32 v{t1}, -v{vKr}, v{hi}, -v{t1}"])
    p2 = []
    cur = (t0, t1)
    for jx in range(16):
        p2 += [f"v_fmac_f32 v{SR+jx}, v{vLr}, v{cur[0]}", f"v_fmac_f32 v{SI+jx}, v{vLr}, v{cur[1]}",
               f"v_fmac_f32 v{SR+jx}, v{vLi}, v{cur[1]}", f"v_fma_f32 v{SI+jx}, -v{vLi}, v{cur[0]}, v{SI+jx}"]
        cur = (SR+jx, SI+jx)
    PK = list(range(240, 256))
    for i in range(8):
        p2 += [f"v_cvt_pk_bf16_f32 v{PK[i]}, v{SR+2*i}, v{SR+2*i+1}"]
    for i in range(8):
        p2 += [f"v_cvt_pk_bf16_f32 v{PK[8+i]}, v{SI+2*i}, v{SI+2*i+1}"]
    TB = 4*SLOT
    ta, tb_ = 226, 227
    addr = [f"v_lshrrev_b32 v{ta}, 5, v0", f"v_lshlrev_b32 v{ta}, 5, v{ta}", f"v_mad_u32_u24 v{ta}, v{vP8}, 10, v{ta}",
            f"s_mul_i32 s53, s3, 5120", f"s_add_u32 s53, s53, {TB}", f"v_add_u32 v{ta}, s53, v{ta}",
            f"v_lshrrev_b32 v{tb_}, 5, v0", f"v_bfe_u32 v228, v0, 2, 2", f"v_lshl_add_u32 v{tb_}, v{tb_}, 3, v228", f"v_mul_u32_u24 v{tb_}, 80, v{tb_}",
            f"v_and_b32 v228, 1, v0", f"v_lshl_add_u32 v{tb_}, v228, 5, v{tb_}", f"v_and_b32 v228, 16, v0", f"v_add_u32 v{tb_}, v228, v{tb_}",
            f"v_and_b32 v228, 2, v0", f"v_lshl_add_u32 v{tb_}, v228, 2, v{tb_}", f"v_add_u32 v{tb_}, s53, v{tb_}"]
    s9 = E(p2)
    wr = [('lg', f"ds_write_b128 v{ta}, v[{PK[4*i]}:{PK[4*i+3]}] offset:{(i//2)*2560 + (i%2)*16}", "tw") for i in range(4)]
    rd = []
    for mat in range(2):
        for s in range(2):
            for q in range(2):
                dst = SR + 8*mat + 4*s + 2*q
                rd.append(('lg', f"ds_read_b64_tr_b16 v[{dst}:{dst+1}], v{tb_} offset:{mat*2560 + (16*s + 4*q)*80}", "tr"))
    st = E([f"s_mul_i32 s53, s31, 168", "s_lshl_b32 s54, s29, 1", "s_add_u32 s53, s53, s54", "s_add_u32 s53, s53, 112", "s_lshl_b32 s53, s53, 10", f"s_add_u32 s54, s53, {28*1024}"])
    for mat in range(2):
        for s in range(2):
            dst = SR + 8*mat + 4*s
            st.append(('vm', f"buffer_store_dwordx4 v[{dst}:{dst+3}], v{vL16}, s[20:23], s{53+mat} offen offset:{s*1024}{sc}", "h"))
    side[8] = s8 + E(addr)
    side[9] = s9 + wr + [('wait', None, "tw")] + rd + [('wait', None, "tr")] + st
    def emit_read(m):
        d = M[m]; b = FR(m)
        for k, (kind, base, off) in enumerate(d['rd']):
            if kind == 'b128': p.lg(f"ds_read_b128 a[{b}:{b+3}], v{base} offset:{off}", f"f{m}")
            else: p.lg(f"ds_read_b64_tr_b16 a[{b+2*k}:{b+2*k+1}], v{base} offset:{off}", f"f{m}")
    def epoch_open(ep):
        p.wait(vm=f"e{ep}")
        e("s_barrier")
        slot = (ep + 4) % 5; prev = (ep + 3) % 5
        if ep == 2:
            t = 250
            e(f"v_lshrrev_b32 v{vT0}, 5, v0\nv_bfe_u32 v{t}, v0, 2, 2\nv_lshl_add_u32 v{vT0}, v{vT0}, 3, v{t}\nv_lshlrev_b32 v{vT0}, 7, v{vT0}")
            e(f"v_and_b32 v{t}, 8, v0\nv_lshl_add_u32 v{vT0}, v{t}, 3, v{vT0}")
            e(f"v_and_b32 v{t}, 16, v0\nv_lshl_add_u32 v{vT0}, v{t}, 1, v{vT0}")
            e(f"v_and_b32 v{t}, 3, v0\nv_lshl_add_u32 v{vT0}, v{t}, 3, v{vT0}")
            e(f"v_xor_b32 v{vT1}, 64, v{vT0}")
            e(f"v_add_u32 v{vT0}, {slot*SLOT}, v{vT0}\nv_add_u32 v{vT1}, {slot*SLOT}, v{vT1}")
        else:
            dlt = ((slot - prev)*SLOT) & 0xffffffff
            e(f"v_add_u32 v{vT0}, {dlt:#x}, v{vT0}\nv_add_u32 v{vT1}, {dlt:#x}, v{vT1}")
        if 2 <= ep <= 6:
            pend.extend(dma_w(ep + 1, f"e{ep+3}"))
    for o in passB(0): e(o)
    for m in range(D): emit_read(m)
    q = []
    nM = len(M)
    for m in range(nM):
        d = M[m]
        if m == 0 or M[m-1]['ep'] != d['ep']:
            q.extend(side[d['ep']])
        if d['kind'] == 'ssm' and m % 2 == 0 and d['ks'] + 1 < 28:
            q.extend(E(passB(d['ks'] + 1)))
        p.wait(lg=f"f{m}")
        b = FR(m); fr = f"a[{b}:{b+3}]"; cc = "0" if d['first'] else d['acc']
        if d['kind'] == 'ssm': e(f"v_mfma_f32_32x32x16_bf16 {d['acc']}, {X(d['ks'])}, {fr}, {cc}")
        else: e(f"v_mfma_f32_32x32x16_bf16 {d['acc']}, {fr}, {X(d['ks'])}, {cc}")
        if m + D < nM:
            if M[m+D]['ep'] != M[m+D-1]['ep']:
                ep = M[m+D]['ep']
                if ep == 3:
                    while q: run_item(p, q.pop(0), run)
                while pend and any(it[0] == 'vm' and it[2] == f"e{ep}" for it in pend): pop_dma(1)
                epoch_open(ep)
            emit_read(m + D)
        if pend and (m % 2 == 0 if d['kind'] == 'ssm' else m % 3 == 0): pop_dma(1)
        budget = 10 if d['kind'] == 'ssm' else per_gap
        if d['ep'] == 2 and m < 56 + 2: budget = 0
        if d['ep'] == 6 and m < 56 + 112 + 3: budget = 0
        rem = sum(1 for mm in range(m, nM) if M[mm]['ep'] == d['ep'])
        n = 0
        while q and n < budget:
            it = q.pop(0); run_item(p, it, run); n += 0 if it[0] == 'wait' else 1
    while q: run_item(p, q.pop(0), run)
    run(epi(1, 0, list(range(232, 244)), False))
    run(epi(1, 1, list(range(244, 256)), False))
    return

def run_item(p, it, run):
    if it[0] == 'atomic': run(it[1])
    else: run([it])
```

```python
from dsl import *
from k1 import *

def gen_k2(p, lab, code_bytes=16384, LA=10):
    e = p.e
    vL16 = 1; vWd = 2; vT0 = 3; vT1 = 4; vC0 = 5; vC1 = 6
    e(f"s_cmp_ge_u32 s2, 224")
    e(f"s_cbranch_scc1 {lab}_end")
    e("s_load_dwordx2 s[64:65], s[0:1], 0")
    e("s_load_dwordx4 s[68:71], s[0:1], 40")
    e("s_load_dwordx2 s[66:67], s[0:1], 64")
    e("s_load_dwordx8 s[72:79], s[0:1], 96")
    e("s_getpc_b64 s[4:5]")
    e("v_lshlrev_b32 v10, 7, v0")
    e(f"v_min_u32 v10, {code_bytes-128}, v10")
    p.vm("global_load_dword v31, v10, s[4:5]", "pf")
    e("v_lshrrev_b32 v11, 6, v0")
    e("v_readfirstlane_b32 s3, v11")
    e("v_and_b32 v0, 63, v0")
    e("s_and_b32 s6, s2, 7")
    e("s_lshr_b32 s7, s2, 3")
    e("s_lshl_b32 s28, s6, 2")
    e("s_and_b32 s29, s7, 3")
    e("s_add_u32 s28, s28, s29")
    e("s_lshr_b32 s29, s7, 2")
    e(f"v_lshlrev_b32 v{vL16}, 4, v0")
    e("v_lshrrev_b32 v10, 3, v0")
    e("s_movk_i32 s44, 896")
    e(f"v_mul_u32_u24 v{vWd}, s44, v10")
    e("v_and_b32 v11, 7, v0")
    e("v_lshrrev_b32 v12, 2, v0")
    e("v_and_b32 v12, 4, v12")
    e("v_xor_b32 v11, v11, v12")
    e(f"v_lshl_add_u32 v{vWd}, v11, 4, v{vWd}")
    e(f"s_mul_i32 s46, s3, {448*896}")
    e("s_lshl_b32 s48, s29, 7")
    e("s_add_u32 s46, s46, s48")
    e(f"v_add_u32 v{vWd}, s46, v{vWd}")
    e("v_lshrrev_b32 v10, 2, v0")
    e("v_and_b32 v13, 3, v0")
    e("s_movk_i32 s44, 448")
    e("s_movk_i32 s30, 147")
    for n in range(7):
        e(f"v_add_u32 v11, {16*n}, v10")
        e(f"v_mul_u32_u24 v12, s30, v11")
        e(f"v_lshlrev_b32 v11, 6, v11")
        e(f"v_lshrrev_b32 v14, 10, v12")
        e(f"v_mad_u32_u24 v11, v14, s44, v11")
        e(f"v_bfe_u32 v12, v12, 12, 2")
        e(f"v_xor_b32 v12, v12, v13")
        e(f"v_lshl_add_u32 v{16+n}, v12, 4, v11")
    WL = 40960
    e(f"s_mul_i32 s41, s3, {WL}")
    e("s_mul_i32 s50, s28, 336")
    e("s_mul_i32 s51, s3, 28")
    e("s_add_u32 s51, s50, s51")
    e("s_lshl_b32 s51, s51, 10")
    e("s_mul_i32 s52, s3, 14")
    e("s_add_u32 s52, s52, s50")
    e("s_add_u32 s52, s52, 112")
    e("s_lshl_b32 s52, s52, 10")
    e(f"v_add_u32 v7, {168*1024}, v{vL16}")
    e("s_waitcnt lgkmcnt(0)")
    e("s_mov_b32 s20, s78\ns_mov_b32 s21, s79")
    e(f"s_mov_b32 s22, {WS_BYTES}\ns_mov_b32 s23, 0x20000")
    e("s_mov_b32 s16, s72\ns_mov_b32 s17, s73")
    e(f"s_mov_b32 s18, {1792*896}\ns_mov_b32 s19, 0x20000")
    e("s_cmp_lt_u32 s3, 2")
    e("s_cselect_b32 s12, s68, s70\ns_cselect_b32 s13, s69, s71")
    e(f"s_mov_b32 s14, {448*896}\ns_mov_b32 s15, 0x20000")
    e("s_mov_b32 s8, s64\ns_mov_b32 s9, s65")
    e(f"s_mov_b32 s10, {2048*896}\ns_mov_b32 s11, 0x20000")
    e("s_mov_b32 s24, s74\ns_mov_b32 s25, s75")
    e(f"s_mov_b32 s26, {2048*1792}\ns_mov_b32 s27, 0x20000")
    e("s_and_b32 s46, s3, 1")
    e("s_mul_i32 s46, s46, 448")
    e(f"s_mul_i32 s47, s29, {64*896}")
    e("s_add_u32 s47, s47, s46")
    NA = 24
    A0 = 64
    def Areg(s, t): b = A0 + 8*(s % NA) + 4*t; return f"v[{b}:{b+3}]"
    def ld_a(s):
        if s < 28: base, k = 51, s
        else: base, k = 52, s - 28
        if k % 4 == 0: e(f"s_add_u32 s53, s{base}, {k*1024}")
        p.vm(f"buffer_load_dwordx4 {Areg(s,0)}, v{vL16}, s[20:23], s53 offen offset:{(k%4)*1024}", f"a{s}")
        p.vm(f"buffer_load_dwordx4 {Areg(s,1)}, v7, s[20:23], s53 offen offset:{(k%4)*1024}", f"a{s}")
    def ld_w(s):
        e(f"s_add_u32 m0, s41, {28672 + (s % 6)*2048}")
        e(f"s_mov_b32 s54, {s*16*896}")
        e(f"s_mov_b32 s55, {s*16*896 + 8*896 - 1024}")
        p.vm(f"buffer_load_dwordx4 v{vWd}, s[16:19], s54 offen lds", f"w{s}")
        p.vm(f"buffer_load_dwordx4 v{vWd}, s[16:19], s55 offen offset:1024 lds", f"w{s}")
    def ld_c(n):
        e(f"s_add_u32 m0, s41, {n*1024}")
        e(f"s_add_u32 s54, s47, {(n//7)*16*896}")
        p.vm(f"buffer_load_dwordx4 v{16+n%7}, s[12:15], s54 offen lds", "c")
    for s in range(5): ld_w(s); ld_a(s)
    for s in range(5, LA): ld_a(s)
    e(f"v_lshrrev_b32 v{vT0}, 5, v0\nv_bfe_u32 v10, v0, 2, 2\nv_lshl_add_u32 v{vT0}, v{vT0}, 2, v10\nv_lshlrev_b32 v{vT0}, 7, v{vT0}")
    e(f"v_and_b32 v10, 8, v0\nv_lshl_add_u32 v{vT0}, v10, 3, v{vT0}")
    e(f"v_and_b32 v10, 16, v0\nv_lshl_add_u32 v{vT0}, v10, 1, v{vT0}")
    e(f"v_and_b32 v10, 3, v0\nv_lshl_add_u32 v{vT0}, v10, 3, v{vT0}")
    e(f"v_xor_b32 v{vT1}, 64, v{vT0}")
    e(f"v_add_u32 v{vT0}, s41, v{vT0}\nv_add_u32 v{vT1}, s41, v{vT1}")
    e("v_and_b32 v10, 31, v0\nv_lshrrev_b32 v11, 5, v0")
    e("v_mul_u32_u24 v12, s44, v10")
    e("v_add_u32 v12, s41, v12")
    e("v_bfe_u32 v13, v0, 2, 2\nv_xor_b32 v13, v13, v11")
    e(f"v_lshl_add_u32 v{vC0}, v13, 4, v12")
    e("v_xor_b32 v13, 2, v13")
    e(f"v_lshl_add_u32 v{vC1}, v13, 4, v12")
    e("s_lshr_b32 s56, s3, 1\ns_lshl_b32 s57, s28, 1\ns_add_u32 s56, s56, s57\ns_lshl_b32 s56, s56, 5")
    e("s_and_b32 s57, s3, 1\ns_lshl_b32 s58, s29, 1\ns_add_u32 s57, s57, s58\ns_lshl_b32 s57, s57, 5")
    e("v_lshl_add_u32 v8, v11, 4, s56")
    e("v_add_u32 v9, s57, v10")
    e("v_mul_u32_u24 v14, s44, v8")
    e("v_add_u32 v14, v14, v9")
    e("v_lshlrev_b32 v15, 1, v14")
    e("v_lshlrev_b32 v14, 2, v14")
    e("v_lshlrev_b32 v8, 3, v8")
    e("v_lshlrev_b32 v9, 1, v9")
    B0 = 128; NB = 3
    def Breg(s, t): b = B0 + 8*(s % NB) + 4*t; return b
    def rd_b(s):
        if s < 28:
            for t in range(2):
                b = Breg(s, t)
                for q in range(2):
                    p.lg(f"ds_read_b64_tr_b16 a[{b+2*q}:{b+2*q+1}], v{(vT0,vT1)[t]} offset:{28672 + (s%6)*2048 + q*1024}", f"b{s}")
        else:
            k = s - 28
            for t in range(2):
                b = Breg(s, t)
                p.lg(f"ds_read_b128 a[{b}:{b+3}], v{(vC0,vC1)[k&1]} offset:{t*14336 + (k>>1)*64}", f"b{s}")
    XV = list(range(32, 48)); STV = 160
    p.wait(vm="w0"); rd_b(0)
    cq = list(range(28))
    for s in range(42):
        if s + 1 < 42:
            if s + 1 < 28: p.wait(vm=f"w{s+1}")
            elif s + 1 == 28: p.wait(vm="c")
            rd_b(s + 1)
        p.wait(vm=f"a{s}", lg=f"b{s}")
        accb = 0 if s < 28 else 64
        first = s in (0, 28)
        k = 0
        for mi in range(2):
            for ni in range(2):
                c0 = accb + 16*(2*mi + ni); acc = f"a[{c0}:{c0+15}]"; b = Breg(s, ni)
                e(f"v_mfma_f32_32x32x16_bf16 {acc}, {Areg(s, mi)}, a[{b}:{b+3}], {'0' if first else acc}")
                if k == 0 and s + 5 < 28: ld_w(s + 5)
                if k == 1 and s + LA < 42: ld_a(s + LA)
                if k == 2 and cq and s >= 2:
                    ld_c(cq.pop(0)); ld_c(cq.pop(0))
                if k == 3 and 18 <= s < 22:
                    for i in range(4):
                        jx = (s - 18)*4 + i
                        p.vm(f"buffer_load_ushort v{XV[jx]}, v15, s[8:11], 0 offen offset:{(jx%4)*896}", "ex")
                    e(f"v_add_u32 v15, {4*896}, v15")
                if k == 3 and s == 22:
                    e(f"s_mov_b32 s59, {WS_ST}")
                    for i in range(8):
                        p.vm(f"buffer_load_dwordx4 a[{STV+4*i}:{STV+4*i+3}], v8, s[20:23], s59 offen offset:{16*i}", "ex")
                    p.vm(f"global_load_ushort v48, v9, s[66:67]", "ex")
                k += 1
    e("s_barrier")
    e(f"s_lshl_b32 s60, s3, 12")
    e(f"v_add_u32 v10, s60, v{vL16}")
    e(f"v_add_u32 v11, 65536, v10")
    for st in range(2):
        for qd in range(4):
            for i in range(4):
                c0 = 64*st + 16*qd + 4*i
                p.lg(f"ds_write_b128 v{10+st}, a[{c0}:{c0+3}] offset:{qd*16384 + i*1024}", "rw")
    p.wait(vm="ex")
    e("v_lshlrev_b32 v48, 16, v48")
    SK = list(range(64, 80))
    for jx in range(16):
        m_, r_ = 50, 51
        e(f"v_accvgpr_read_b32 v{m_}, a{STV+2*jx}\nv_accvgpr_read_b32 v{r_}, a{STV+2*jx+1}")
        e(f"v_lshlrev_b32 v{XV[jx]}, 16, v{XV[jx]}")
        e(f"v_sub_f32 v52, v{XV[jx]}, v{m_}")
        e(f"v_mul_f32 v52, v52, v{r_}")
        e(f"v_cvt_pk_bf16_f32 v52, v52, v52\nv_and_b32 v52, 0xffff0000, v52")
        e(f"v_mul_f32 v{SK[jx]}, v52, v48")
    p.wait(lg="all")
    e("s_barrier")
    e(f"s_lshl_b32 s60, s3, 14")
    e(f"v_add_u32 v10, s60, v{vL16}")
    e(f"v_add_u32 v11, 65536, v10")
    RF = 96; RY = 160
    for st in range(2):
        for src in range(4):
            for i in range(4):
                b = (RF, RY)[st] + 16*src + 4*i
                p.lg(f"ds_read_b128 v[{b}:{b+3}], v{10+st} offset:{src*4096 + i*1024}", f"rr{st}")
    p.wait(lg="rr0")
    for i in range(8):
        b = RF + 2*i
        e(f"v_pk_add_f32 v[{b}:{b+1}], v[{b}:{b+1}], v[{b+16}:{b+17}]")
        e(f"v_pk_add_f32 v[{b+32}:{b+33}], v[{b+32}:{b+33}], v[{b+48}:{b+49}]")
    for i in range(8):
        b = RF + 2*i
        e(f"v_pk_add_f32 v[{b}:{b+1}], v[{b}:{b+1}], v[{b+32}:{b+33}]")
    for jx in range(16):
        e(f"v_mul_f32 v{RF+16+jx}, {(LOG2E | 0x80000000):#x}, v{RF+jx}")
    for jx in range(16): e(f"v_exp_f32 v{RF+16+jx}, v{RF+16+jx}")
    for jx in range(16): e(f"v_add_f32 v{RF+16+jx}, 1.0, v{RF+16+jx}")
    for jx in range(16): e(f"v_rcp_f32 v{RF+16+jx}, v{RF+16+jx}")
    for jx in range(16): e(f"v_mul_f32 v{RF+jx}, v{RF+jx}, v{RF+16+jx}")
    p.wait(lg="rr1")
    for i in range(8):
        b = RY + 2*i
        e(f"v_pk_add_f32 v[{b}:{b+1}], v[{b}:{b+1}], v[{b+16}:{b+17}]")
        e(f"v_pk_add_f32 v[{b+32}:{b+33}], v[{b+32}:{b+33}], v[{b+48}:{b+49}]")
        e(f"v_pk_add_f32 v[{b}:{b+1}], v[{b}:{b+1}], v[{SK[2*i]}:{SK[2*i+1]}]")
    for i in range(8):
        b = RY + 2*i
        e(f"v_pk_add_f32 v[{b}:{b+1}], v[{b}:{b+1}], v[{b+32}:{b+33}]")
    for jx in range(16):
        e(f"v_fma_f32 v{XV[jx]}, v{RY+jx}, v{RF+jx}, v{XV[jx]}")
        p.vm(f"buffer_store_dword v{XV[jx]}, v14, s[24:27], 0 offen offset:{(jx%2)*1792}", "o")
        if jx % 2 == 1 and jx < 15: e(f"v_add_u32 v14, {2*1792}, v14")
```

```python
import sys
from dsl import *
from k1 import *
from k2 import *
HDR = open("recurrent_scan__ssm_conv_s5__glu_gated_bilinear__prompt.s.ref").read().split("; Override launch")[0]
def kern(name, gen, **kw):
    p = Prog(); gen(p, name, **kw)
    p.e(f"{name}_end:\ns_endpgm")
    for t in getattr(p, 'tail', []): p.e(t)
    txt = p.text()
    sys.stderr.write(f"{name}: {len(p.ins)} insts, {p.nops} nops inserted\n")
    return f".globl {name}\n.p2align 8\n.type {name},@function\n{name}:\n{txt}\n"
def desc(name, vg=512, acc=256):
    return f""".p2align 6
.amdhsa_kernel {name}
  .amdhsa_next_free_vgpr {vg}
  .amdhsa_next_free_sgpr 96
  .amdhsa_accum_offset {acc}
  .amdhsa_group_segment_fixed_size 0
  .amdhsa_kernarg_size 128
  .amdhsa_user_sgpr_count 2
  .amdhsa_user_sgpr_kernarg_segment_ptr 1
  .amdhsa_system_sgpr_workgroup_id_x 1
  .amdhsa_float_denorm_mode_32 3
.end_amdhsa_kernel
"""
out = HDR + "; @launch kernel=ph1_kernel grid=(224,1,1) block=(256,1,1) lds=163840\n; @launch kernel=ph2_kernel grid=(224,1,1) block=(256,1,1) lds=163840\n"
out += '.amdgcn_target "amdgcn-amd-amdhsa--gfx950"\n.text\n'
out += kern("ph1_kernel", gen_k1, code_bytes=19200) + kern("ph2_kernel", gen_k2, code_bytes=8704)
out += '.section .rodata,"a"\n' + desc("ph1_kernel") + desc("ph2_kernel")
open(sys.argv[1], "w").write(out)
```
